```python
import torch

def _softmax(x, axis=-1):
    return torch.softmax(x, dim=axis)
def _gelu(x):
    return torch.nn.functional.gelu(x, approximate="tanh")
def _silu(x):
    return torch.nn.functional.silu(x)
def _sigmoid(x):
    return torch.sigmoid(x)
def _layernorm(x, axis=-1, eps=1e-5):
    m = x.mean(dim=axis, keepdim=True)
    v = x.var(dim=axis, keepdim=True, unbiased=False)
    return (x - m) / torch.sqrt(v + eps)
def _scatter_add(tgt, idx, src, axis=0):
    return tgt.clone().index_add_(axis, idx, src)
def _segment_sum(src, seg, n):
    out = torch.zeros((n,) + src.shape[1:], dtype=src.dtype)
    return out.index_add_(0, seg, src)
def _pad(x, pw):
    flat = tuple(v for pair in reversed(pw) for v in pair)
    return torch.nn.functional.pad(x, flat)

kernel_name = 'sequential_preLN__softmax_full_mha__dense_activation_relu__prompt'

def setup_inputs():

    _w = (lambda a: (lambda t: t.to(torch.bfloat16) if t.is_floating_point() else t)(torch.as_tensor(a)))
    def _A_setup():
        B, S, D = 1, 2048, 640
        return {
            "x": _w((lambda *s: torch.randn(*s, dtype=torch.bfloat16) * 0.05)(B, S, D)),
            "wqkv": _w((lambda *s: torch.randn(*s, dtype=torch.bfloat16) * 0.05)(D, 3 * D)),
            "wo": _w((lambda *s: torch.randn(*s, dtype=torch.bfloat16) * 0.05)(D, D)),
        }
    _A_in = _A_setup()

    def _B_setup():
        B, S, D, Dff = 1, 2048, 640, 1536
        return {
            "x": _w((lambda *s: torch.randn(*s, dtype=torch.bfloat16) * 0.05)(B, S, D)),
            "w1": _w((lambda *s: torch.randn(*s, dtype=torch.bfloat16) * 0.05)(D, Dff)),
            "w2": _w((lambda *s: torch.randn(*s, dtype=torch.bfloat16) * 0.05)(Dff, D)),
        }
    _B_in = _B_setup()

    return {
        "A_x": _A_in["x"],
        "A_wqkv": _A_in["wqkv"],
        "A_wo": _A_in["wo"],
        "B_x": _B_in["x"],
        "B_w1": _B_in["w1"],
        "B_w2": _B_in["w2"],
    }

def reference(A_x, A_wqkv, A_wo, B_x, B_w1, B_w2):
    def _A_ref(x, wqkv, wo):
        B, S, D = x.shape
        H = 32; Dh = D // H
        qkv = (lambda x, *d: x.permute(*d))((x @ wqkv).reshape(B, S, 3, H, Dh), 2, 0, 3, 1, 4)
        q, k, v = qkv[0], qkv[1], qkv[2]
        scale = Dh ** -0.5
        scores = torch.einsum("bhqd,bhkd->bhqk", q, k) * scale
        p = _softmax(scores, axis=-1)
        o = torch.einsum("bhqk,bhkd->bhqd", p, v)
        return (lambda x, *d: x.permute(*d))(o, 0, 2, 1, 3).reshape(B, S, D) @ wo

    def _B_ref(x, w1, w2):
        h = torch.einsum("bsd,df->bsf", x, w1)
        zero = torch.zeros_like(h)
        h = torch.maximum(h, zero)
        return torch.einsum("bsf,fd->bsd", h, w2)

    x = A_x
    h = x + _A_ref(_layernorm(x, axis=-1), A_wqkv, A_wo)
    h2 = h + _B_ref(_layernorm(h, axis=-1), B_w1, B_w2)
    return h2
```

```python
class Asm:
    def __init__(self):
        self.lines = []
        self.uid = 0
    def __call__(self, s):
        for ln in s.split("\n"):
            ln = ln.strip()
            if ln:
                self.lines.append("    " + ln)
    def label(self, l):
        self.lines.append(l + ":")
    def raw(self, s):
        self.lines.append(s)
    def newlabel(self, base):
        self.uid += 1
        return f"L_{base}_{self.uid}"
    def text(self):
        return "\n".join(self.lines) + "\n"

def vr(b, n=1):
    return f"v{b}" if n == 1 else f"v[{b}:{b+n-1}]"
def ar(b, n=1):
    return f"a{b}" if n == 1 else f"a[{b}:{b+n-1}]"
def sr(b, n=1):
    return f"s{b}" if n == 1 else f"s[{b}:{b+n-1}]"

def kernel_begin(A, name):
    A.raw(".text")
    A.raw(f".globl {name}")
    A.raw(".p2align 8")
    A.raw(f".type {name},@function")
    A.label(name)

def kernel_desc(name, nvgpr, nsgpr, accum=None, nagpr=0):
    if accum is None:
        accum = (nvgpr + 3) // 4 * 4
    total = accum + nagpr if nagpr else nvgpr
    return f""".section .rodata,"a"
.p2align 6
.amdhsa_kernel {name}
  .amdhsa_next_free_vgpr {total}
  .amdhsa_next_free_sgpr {nsgpr}
  .amdhsa_accum_offset {accum}
  .amdhsa_group_segment_fixed_size 0
  .amdhsa_kernarg_size 72
  .amdhsa_user_sgpr_count 2
  .amdhsa_user_sgpr_kernarg_segment_ptr 1
  .amdhsa_system_sgpr_workgroup_id_x 1
.end_amdhsa_kernel
"""

def make_srd(A, dst, ptr, nbytes):
    A(f"s_mov_b32 s{dst}, s{ptr}")
    A(f"s_and_b32 s{dst+1}, s{ptr+1}, 0xffff")
    A(f"s_mov_b32 s{dst+2}, {nbytes}")
    A(f"s_mov_b32 s{dst+3}, 0x20000")

WS_KV  = 0x0
WS_Q   = 0x500000
WS_O   = 0x780000
WS_H   = 0xA00000
WS_ST  = 0xC80000
WS_HID = 0xD00000
WS_WO  = 0x1300000
WS_W1  = 0x1400000
WS_W2  = 0x1600000
WS_END = 0x1800000

import os
STAMPS = bool(os.environ.get("STAMPS"))
WS_DBG = 0x2000000
STAMP_S = 64
def stamp(A, i, real=False):
    if STAMPS:
        A(f"{'s_memrealtime' if real else 's_memtime'} s[{STAMP_S+2*i}:{STAMP_S+2*i+1}]")
def stamp_flush(A, n, kidx, ws_ptr_pair, wave_sgpr, vtmp):
    if not STAMPS: return
    A("s_waitcnt vmcnt(0) lgkmcnt(0)")
    A(f"s_memtime s[{STAMP_S+2*n}:{STAMP_S+2*n+1}]")
    A(f"s_memrealtime s[{STAMP_S+2*n+2}:{STAMP_S+2*n+3}]")
    A("s_waitcnt lgkmcnt(0)")
    if False:
        lab = A.newlabel("dbgx")
        A(f"s_cmp_lg_u32 s2, {os.environ.get('DBGWG', '37')}")
        A(f"s_cbranch_scc1 {lab}")
        A(f"s_and_b32 s96, s{wave_sgpr}, 0xfb")
        A(f"s_cmp_lg_u32 s96, 0")
        A(f"s_cbranch_scc1 {lab}")
        A("s_load_dwordx2 s[98:99], s[0:1], 56")
        A(f"s_lshl_b32 s96, s{wave_sgpr}, 3")
        A("s_waitcnt lgkmcnt(0)")
        for i in range(8):
            idx = i + 2
            if i < 7:
                A(f"s_sub_u32 s97, s{STAMP_S+2*idx}, s{STAMP_S+2}")
            else:
                A(f"s_sub_u32 s97, s{STAMP_S+2*idx}, s{STAMP_S}")
            A(f"v_mov_b32 v{vtmp}, s96")
            A(f"v_mov_b32 v{vtmp+1}, s97")
            A(f"global_store_dword v{vtmp}, v{vtmp+1}, s[98:99] offset:{4*i}")
            A("s_nop 1")
        A.label(lab)
    A(f"s_lshl_b32 s96, s2, 4")
    A(f"s_add_u32 s96, s96, s{wave_sgpr}")
    A(f"s_lshl_b32 s96, s96, 6")
    A(f"s_add_u32 s96, s96, {WS_DBG + kidx*0x40000}")
    for i in range(n + 2):
        A(f"v_mov_b32 v{vtmp}, s96")
        A(f"v_mov_b32 v{vtmp+1}, s{STAMP_S+2*i}")
        A(f"global_store_dword v{vtmp}, v{vtmp+1}, s[{ws_ptr_pair}:{ws_ptr_pair+1}] offset:{4*i}")
        A("s_nop 1")
```

```python
import sys, importlib
sys.path.insert(0, 'gen')
from asmlib import *
NAME = "sequential_preLN__softmax_full_mha__dense_activation_relu__prompt"
HEADER = open(f'cdna_kernels/{NAME}.s.ref').read().split("; Override launch")[0]

def build(kernels, out):
    A = Asm()
    launches = []
    for modname, fn, kname in kernels:
        mod = importlib.import_module(modname)
        cfg = getattr(mod, fn)(A, kname)
        launches.append(f"; @launch kernel={kname} grid=({cfg['grid']},1,1) block=({cfg['block']},1,1) lds={cfg['lds']}")
    DOC = """; Generated by hand-written python generators (gen/k1.py, gen/kf.py).
"""
    txt = HEADER + "\n".join(launches) + "\n" + DOC + '.amdgcn_target "amdgcn-amd-amdhsa--gfx950"\n' + A.text()
    open(out, 'w').write(txt)

ALL = [("k1", "gen_k1", "qkv_kernel"), ("k2", "gen_k2", "attn_kernel"), ("k3", "gen_k3", "oproj_kernel"),
       ("k4", "gen_k4", "ffn1_kernel"), ("k5", "gen_k5", "ffn2_kernel")]
import os
if os.environ.get("FUSED", "1") == "1":
    ALL = [("k1", "gen_k1", "qkv_kernel"), ("kf", "gen_kf", "fused_kernel")]
if os.environ.get("MERGED", "0") == "1":
    ALL = [("kf", "gen_all", "fused_kernel")]
if __name__ == "__main__":
    n = int(sys.argv[1]) if len(sys.argv) > 1 else 5
    out = sys.argv[2] if len(sys.argv) > 2 else f'cdna_kernels/{NAME}.s'
    import os
    build(ALL[:n] + ([('kdbg','gen_dbg','dbg_kernel')] if os.environ.get('DBGK') else []), out)
```

```python
class Asm:
    def __init__(self):
        self.lines = []
        self.uid = 0
    def __call__(self, s):
        for ln in s.split("\n"):
            ln = ln.strip()
            if ln:
                self.lines.append("    " + ln)
    def label(self, l):
        self.lines.append(l + ":")
    def raw(self, s):
        self.lines.append(s)
    def newlabel(self, base):
        self.uid += 1
        return f"L_{base}_{self.uid}"
    def text(self):
        return "\n".join(self.lines) + "\n"

def vr(b, n=1):
    return f"v{b}" if n == 1 else f"v[{b}:{b+n-1}]"
def ar(b, n=1):
    return f"a{b}" if n == 1 else f"a[{b}:{b+n-1}]"
def sr(b, n=1):
    return f"s{b}" if n == 1 else f"s[{b}:{b+n-1}]"

def kernel_begin(A, name):
    A.raw(".text")
    A.raw(f".globl {name}")
    A.raw(".p2align 8")
    A.raw(f".type {name},@function")
    A.label(name)

def kernel_desc(name, nvgpr, nsgpr, accum=None, nagpr=0):
    if accum is None:
        accum = (nvgpr + 3) // 4 * 4
    total = accum + nagpr if nagpr else nvgpr
    return f""".section .rodata,"a"
.p2align 6
.amdhsa_kernel {name}
  .amdhsa_next_free_vgpr {total}
  .amdhsa_next_free_sgpr {nsgpr}
  .amdhsa_accum_offset {accum}
  .amdhsa_group_segment_fixed_size 0
  .amdhsa_kernarg_size 72
  .amdhsa_user_sgpr_count 2
  .amdhsa_user_sgpr_kernarg_segment_ptr 1
  .amdhsa_system_sgpr_workgroup_id_x 1
.end_amdhsa_kernel
"""

def make_srd(A, dst, ptr, nbytes):
    A(f"s_mov_b32 s{dst}, s{ptr}")
    A(f"s_and_b32 s{dst+1}, s{ptr+1}, 0xffff")
    A(f"s_mov_b32 s{dst+2}, {nbytes}")
    A(f"s_mov_b32 s{dst+3}, 0x20000")

WS_KV  = 0x0
WS_Q   = 0x500000
WS_O   = 0x780000
WS_H   = 0xA00000
WS_ST  = 0xC80000
WS_HID = 0xD00000
WS_WO  = 0x1300000
WS_W1  = 0x1400000
WS_W2  = 0x1600000
WS_END = 0x1800000

import os
STAMPS = bool(os.environ.get("STAMPS"))
WS_DBG = 0x2000000
STAMP_S = 64
def stamp(A, i, real=False):
    if os.environ.get("ITSTAMP") and i in (11, 12, 13): return
    if STAMPS:
        A(f"{'s_memrealtime' if real else 's_memtime'} s[{STAMP_S+2*i}:{STAMP_S+2*i+1}]")
def stamp_flush(A, n, kidx, ws_ptr_pair, wave_sgpr, vtmp):
    if not STAMPS: return
    A("s_waitcnt vmcnt(0) lgkmcnt(0)")
    A(f"s_memtime s[{STAMP_S+2*n}:{STAMP_S+2*n+1}]")
    A(f"s_memrealtime s[{STAMP_S+2*n+2}:{STAMP_S+2*n+3}]")
    A("s_waitcnt lgkmcnt(0)")
    if False:
        lab = A.newlabel("dbgx")
        A(f"s_cmp_lg_u32 s2, {os.environ.get('DBGWG', '37')}")
        A(f"s_cbranch_scc1 {lab}")
        A(f"s_and_b32 s96, s{wave_sgpr}, 0xfb")
        A(f"s_cmp_lg_u32 s96, 0")
        A(f"s_cbranch_scc1 {lab}")
        A("s_load_dwordx2 s[98:99], s[0:1], 56")
        A(f"s_lshl_b32 s96, s{wave_sgpr}, 3")
        A("s_waitcnt lgkmcnt(0)")
        for i in range(8):
            idx = i + 2
            if i < 7:
                A(f"s_sub_u32 s97, s{STAMP_S+2*idx}, s{STAMP_S+2}")
            else:
                A(f"s_sub_u32 s97, s{STAMP_S+2*idx}, s{STAMP_S}")
            A(f"v_mov_b32 v{vtmp}, s96")
            A(f"v_mov_b32 v{vtmp+1}, s97")
            A(f"global_store_dword v{vtmp}, v{vtmp+1}, s[98:99] offset:{4*i}")
            A("s_nop 1")
        A.label(lab)
    A(f"s_lshl_b32 s96, s2, 4")
    A(f"s_add_u32 s96, s96, s{wave_sgpr}")
    A(f"s_lshl_b32 s96, s96, 6")
    A(f"s_add_u32 s96, s96, {WS_DBG + kidx*0x40000}")
    for i in range(n + 2):
        A(f"v_mov_b32 v{vtmp}, s96")
        A(f"v_mov_b32 v{vtmp+1}, s{STAMP_S+2*i}")
        A(f"global_store_dword v{vtmp}, v{vtmp+1}, s[{ws_ptr_pair}:{ws_ptr_pair+1}] offset:{4*i}")
        A("s_nop 1")

WS_CS = 0x1880000
WS_FL = 0x1900000
FL_W, FL_O, FL_H, FL_D = 0x0, 0x1000, 0x4000, 0x6000
WS_END = 0x1A00000

WS_ST1 = 0x1890000
FL_Q, FL_S = 0x800, 0xC00
FL_O2 = 0x8000
if os.environ.get("HALIAS") == "1": WS_H = WS_Q
```
